```python
import torch

def _softmax(x, axis=-1):
    return torch.softmax(x, dim=axis)
def _gelu(x):
    return torch.nn.functional.gelu(x, approximate="tanh")
def _silu(x):
    return torch.nn.functional.silu(x)
def _sigmoid(x):
    return torch.sigmoid(x)
def _layernorm(x, axis=-1, eps=1e-5):
    m = x.mean(dim=axis, keepdim=True)
    v = x.var(dim=axis, keepdim=True, unbiased=False)
    return (x - m) / torch.sqrt(v + eps)
def _scatter_add(tgt, idx, src, axis=0):
    return tgt.clone().index_add_(axis, idx, src)
def _segment_sum(src, seg, n):
    out = torch.zeros((n,) + src.shape[1:], dtype=src.dtype)
    return out.index_add_(0, seg, src)
def _pad(x, pw):
    flat = tuple(v for pair in reversed(pw) for v in pair)
    return torch.nn.functional.pad(x, flat)

kernel_name = 'gated_mix__grouped_kv_mqa__dense_activation_mish__prompt'

def setup_inputs():

    _w = (lambda a: (lambda t: t.to(torch.bfloat16) if t.is_floating_point() else t)(torch.as_tensor(a)))
    def _A_setup():
        B, S, D, H = 1, 2048, 512, 32
        Dh = D // H
        return {
            "x": _w((lambda *s: torch.randn(*s, dtype=torch.bfloat16) * 0.05)(B, S, D)),
            "wq": _w((lambda *s: torch.randn(*s, dtype=torch.bfloat16) * 0.8)(D, H * Dh)),
            "wk": _w((lambda *s: torch.randn(*s, dtype=torch.bfloat16) * 0.8)(D, Dh)),
            "wv": _w((lambda *s: torch.randn(*s, dtype=torch.bfloat16) * 0.05)(D, Dh)),
            "wo": _w((lambda *s: torch.randn(*s, dtype=torch.bfloat16) * 0.05)(H * Dh, D)),
        }
    _A_in = _A_setup()

    def _B_setup():
        B, S, D, F = 1, 2048, 512, 1792
        return {
            "x": _w((lambda *s: torch.randn(*s, dtype=torch.bfloat16) * 0.05)(B, S, D)),
            "w1": _w((lambda *s: torch.randn(*s, dtype=torch.bfloat16) * 3.2)(D, F) * (D ** -0.5)),
            "b1": _w((lambda *s: torch.randn(*s, dtype=torch.bfloat16) * 0.05)(F)),
            "w2": _w((lambda *s: torch.randn(*s, dtype=torch.bfloat16) * 0.05)(F, D) * (F ** -0.5)),
        }
    _B_in = _B_setup()

    return {
        "A_x": _A_in["x"],
        "A_wq": _A_in["wq"],
        "A_wk": _A_in["wk"],
        "A_wv": _A_in["wv"],
        "A_wo": _A_in["wo"],
        "B_x": _B_in["x"],
        "B_w1": _B_in["w1"],
        "B_b1": _B_in["b1"],
        "B_w2": _B_in["w2"],
        "gate_w": _w((lambda *s: torch.randn(*s, dtype=torch.bfloat16) * 0.05)(512) * 16.0),
    }

def reference(A_x, A_wq, A_wk, A_wv, A_wo, B_x, B_w1, B_b1, B_w2, gate_w):
    def _A_ref(x, wq, wk, wv, wo):
        B, S, D = x.shape
        H = 32
        Dh = D // H
        q = (lambda x, *d: x.permute(*d))((x @ wq).reshape(B, S, H, Dh), 0, 2, 1, 3)
        k = x @ wk
        v = x @ wv
        scores = torch.einsum("bhqd,bkd->bhqk", q, k) * (Dh ** -0.5)
        p = _softmax(scores, axis=-1)
        o = torch.einsum("bhqk,bkd->bhqd", p, v)
        return (lambda x, *d: x.permute(*d))(o, 0, 2, 1, 3).reshape(B, S, H * Dh) @ wo

    def _B_ref(x, w1, b1, w2):
        h = torch.einsum("bsd,df->bsf", x, w1) + b1
        sp = torch.log1p(torch.exp(-torch.abs(h))) + torch.where(h > 0, h, torch.zeros_like(h))
        act = h * torch.tanh(sp)
        return torch.einsum("bsf,fd->bsd", act, w2)

    x = A_x
    g = _sigmoid((x * gate_w).sum(-1, keepdims=True))
    a = _A_ref(x, A_wq, A_wk, A_wv, A_wo)
    b = _B_ref(x, B_w1, B_b1, B_w2)
    return g * a + (1 - g) * b
```

```python
import sys, os, subprocess, struct
sys.path.insert(0, "cdna_kernels")
import numpy as np

HDR = """.amdgcn_target "amdgcn-amd-amdhsa--gfx950"
.text
"""

def kernel(name, body, vgpr=128, sgpr=96, agpr=0):
    acc = (vgpr + 3) // 4 * 4
    return f"""
.globl {name}
.p2align 8
.type {name},@function
{name}:
{body}
s_endpgm
""", f"""
.amdhsa_kernel {name}
  .amdhsa_next_free_vgpr {acc + agpr}
  .amdhsa_next_free_sgpr {sgpr}
  .amdhsa_accum_offset {acc}
  .amdhsa_group_segment_fixed_size 0
  .amdhsa_kernarg_size 24
  .amdhsa_user_sgpr_count 2
  .amdhsa_user_sgpr_kernarg_segment_ptr 1
  .amdhsa_system_sgpr_workgroup_id_x 1
.end_amdhsa_kernel
"""

def build(kernels, path):
    lines = []
    for (name, body, vgpr, block, lds, grid) in kernels:
        lines.append(f"; @launch kernel={name} grid=({grid},1,1) block=({block},1,1) lds={lds}")
    asm = "\n".join(lines) + "\n" + HDR
    descs = []
    for (name, body, vgpr, block, lds, grid) in kernels:
        c, d = kernel(name, body, vgpr)
        asm += c
        descs.append(d)
    asm += '.section .rodata,"a"\n.p2align 6\n' + "\n.p2align 6\n".join(descs)
    open(path, "w").write(asm)
    return asm

def timing_wrap(loop_body, setup, iters, align=True):
    return f"""
    s_load_dwordx2 s[4:5], s[0:1], 0
    s_load_dwordx2 s[6:7], s[0:1], 8
    s_waitcnt lgkmcnt(0)
    s_mov_b32 s8, s6
    s_mov_b32 s9, s7
    s_mov_b32 s10, 0x1000000
    s_mov_b32 s11, 0x00020000
    s_mov_b32 s12, s4
    s_mov_b32 s13, s5
    s_mov_b32 s14, 0x1000000
    s_mov_b32 s15, 0x00020000
{setup}
    s_mov_b32 s20, {iters}
    s_barrier
    s_memtime s[16:17]
    s_waitcnt lgkmcnt(0)
.p2align 6
LOOP_%=:
{loop_body}
    s_sub_u32 s20, s20, 1
    s_cmp_lg_u32 s20, 0
    s_cbranch_scc1 LOOP_%=
    s_memtime s[18:19]
    s_waitcnt lgkmcnt(0)
    s_sub_u32 s18, s18, s16
    s_subb_u32 s19, s19, s17
    v_lshrrev_b32 v1, 6, v0
    s_lshl_b32 s3, s2, 4
    v_add_u32 v1, s3, v1
    v_lshlrev_b32 v1, 2, v1
    v_mov_b32 v2, s18
    v_and_b32 v3, 63, v0
    v_cmp_eq_u32 vcc, 0, v3
    s_and_saveexec_b64 s[22:23], vcc
    buffer_store_dword v2, v1, s[8:11], 0 offen
    s_waitcnt vmcnt(0)
"""
```

```python
import json
from mblib import *
def wrap(name, setup, loads):
    return f"""
    s_cmp_ge_u32 s2, 256
    s_cbranch_scc1 END_{name}
    s_load_dwordx2 s[4:5], s[0:1], 0
    s_load_dwordx2 s[6:7], s[0:1], 8
    s_waitcnt lgkmcnt(0)
    s_mov_b32 s8, s6
    s_mov_b32 s9, s7
    s_mov_b32 s10, 0x1000000
    s_mov_b32 s11, 0x00020000
    s_mov_b32 s12, s4
    s_mov_b32 s13, s5
    s_mov_b32 s14, 0x1000000
    s_mov_b32 s15, 0x00020000
    s_and_b32 s30, s2, 7
    s_lshr_b32 s31, s2, 3
    s_and_b32 s32, s30, 3
    s_lshl_b32 s32, s32, 2
    s_and_b32 s33, s31, 3
    s_add_u32 s32, s32, s33      ; pblk
    s_lshr_b32 s33, s30, 2
    s_lshl_b32 s33, s33, 3
    s_lshr_b32 s34, s31, 2
    s_add_u32 s33, s33, s34      ; grp
    v_lshrrev_b32 v1, 6, v0
    v_readfirstlane_b32 s35, v1  ; wave
    v_and_b32 v2, 63, v0         ; lane
{setup}
    s_barrier
    s_memtime s[16:17]
    s_waitcnt lgkmcnt(0)
{loads}
    s_memtime s[20:21]
    s_waitcnt vmcnt(0)
    s_memtime s[18:19]
    s_waitcnt lgkmcnt(0)
    s_sub_u32 s18, s18, s16
    s_sub_u32 s20, s20, s16
    v_lshrrev_b32 v1, 6, v0
    s_lshl_b32 s3, s2, 4
    v_add_u32 v1, s3, v1
    v_lshlrev_b32 v1, 2, v1
    v_and_b32 v3, 63, v0
    v_cmp_eq_u32 vcc, 0, v3
    s_and_saveexec_b64 s[22:23], vcc
    v_mov_b32 v2, s18
    buffer_store_dword v2, v1, s[8:11], 0 offen
    v_mov_b32 v2, s20
    buffer_store_dword v2, v1, s[8:11], 0 offen offset:16
    buffer_store_dword v2, v1, s[8:11], 0 offen offset:32
    s_waitcnt vmcnt(0)
END_{name}:
"""
ks=[]
setup=""" s_lshl_b32 s36, s32, 2
 s_add_u32 s36, s36, s35
 s_lshl_b32 s36, s36, 15     ; ptile*32*1024
 v_and_b32 v3, 31, v2
 v_lshlrev_b32 v3, 10, v3
 v_lshrrev_b32 v4, 5, v2
 v_lshlrev_b32 v4, 4, v4
 v_add_u32 v3, v3, v4
"""
loads="\n".join(f" buffer_load_dwordx4 v[{16+4*k}:{19+4*k}], v3, s[12:15], s36 offen offset:{32*k}" for k in range(32))
ks.append(("xdirect_kernel", wrap("a",setup,loads), 160, 256, 90000, 256))
setup2=setup.replace("v_lshlrev_b32 v4, 4, v4","v_lshlrev_b32 v4, 6, v4")
loads="\n".join(f" buffer_load_dwordx4 v[{16+4*k}:{19+4*k}], v3, s[12:15], s36 offen offset:{(k&3)*16+(k>>2)*128}" for k in range(32))
ks.append(("xdirect64_kernel", wrap("a2",setup2,loads), 160, 256, 90000, 256))
setup=""" s_lshl_b32 s36, s32, 2
 s_add_u32 s36, s36, s35
 s_lshl_b32 s36, s36, 15
 v_lshlrev_b32 v3, 4, v2
"""
loads="\n".join(f" s_add_u32 s37, s36, {1024*k}\n buffer_load_dwordx4 v[{16+4*k}:{19+4*k}], v3, s[12:15], s37 offen" for k in range(32))
ks.append(("coal_kernel", wrap("b",setup,loads), 160, 256, 90000, 256))
loads="\n".join(f" s_add_u32 s37, s36, {1024*k}\n s_mov_b32 m0, s38\n s_add_u32 s38, s38, 1024\n buffer_load_dwordx4 v3, s[12:15], s37 offen lds" for k in range(32))
setupc=setup+" s_lshl_b32 s38, s35, 15\n"
ks.append(("dmacoal_kernel", wrap("c",setupc,loads), 160, 256, 163840, 256))
setupd=""" s_mul_i32 s36, s35, 3584*128
 s_add_u32 s36, s36, 0x400000
 s_and_b32 s39, s33, 7
 s_lshl_b32 s39, s39, 8
 s_add_u32 s36, s36, s39
 v_lshrrev_b32 v3, 2, v2
 v_mul_u32_u24 v3, 3584, v3
 v_and_b32 v4, 3, v2
 v_lshlrev_b32 v4, 4, v4
 v_add_u32 v3, v3, v4
 s_lshl_b32 s38, s35, 15
"""
loads="\n".join(f" s_add_u32 s37, s36, {64*(k>>3)+3584*16*(k&7)}\n s_mov_b32 m0, s38\n s_add_u32 s38, s38, 1024\n buffer_load_dwordx4 v3, s[12:15], s37 offen lds" for k in range(32))
ks.append(("dma64_kernel", wrap("d",setupd,loads), 160, 256, 163840, 256))
setupe=setupd.replace("v_lshrrev_b32 v3, 2, v2","v_lshrrev_b32 v3, 3, v2").replace("v_and_b32 v4, 3, v2","v_and_b32 v4, 7, v2")
loads="\n".join(f" s_add_u32 s37, s36, {128*(k>>4)+3584*8*(k&15)}\n s_mov_b32 m0, s38\n s_add_u32 s38, s38, 1024\n buffer_load_dwordx4 v3, s[12:15], s37 offen lds" for k in range(32))
ks.append(("dma128_kernel", wrap("e",setupe,loads), 160, 256, 163840, 256))
setupf=""" s_lshl_b32 s36, s2, 2
 s_add_u32 s36, s36, s35
 s_lshl_b32 s36, s36, 11
 s_add_u32 s36, s36, 0x800000
 v_and_b32 v3, 31, v2
 v_lshlrev_b32 v3, 1, v3
 v_lshrrev_b32 v4, 5, v2
 v_lshlrev_b32 v4, 12, v4
 v_add_u32 v3, v3, v4
"""
loads="\n".join(f" s_add_u32 s37, s36, {1024*(k&3)+8192*((k>>2)&1)+64*(k>>3)}\n buffer_load_ushort v{16+k}, v3, s[12:15], s37 offen" for k in range(24))
ks.append(("ushort_kernel", wrap("f",setupf,loads), 160, 256, 90000, 256))
setupg=""" s_lshl_b32 s36, s32, 2
 s_add_u32 s36, s36, s35
 s_lshl_b32 s36, s36, 15
 v_lshrrev_b32 v3, 3, v2
 v_lshlrev_b32 v3, 10, v3
 v_and_b32 v4, 7, v2
 v_lshlrev_b32 v4, 4, v4
 v_add_u32 v3, v3, v4
 s_lshl_b32 s38, s35, 15
"""
loads="\n".join(f" s_add_u32 s37, s36, {128*(k>>2)+8192*(k&3)}\n s_mov_b32 m0, s38\n s_add_u32 s38, s38, 1024\n buffer_load_dwordx4 v3, s[12:15], s37 offen lds" for k in range(32))
ks.append(("dmax128_kernel", wrap("g",setupg,loads), 160, 256, 163840, 256))
build(ks, "mb5.s")
```
